```python
import torch

def _softmax(x, axis=-1):
    return torch.softmax(x, dim=axis)
def _gelu(x):
    return torch.nn.functional.gelu(x, approximate="tanh")
def _silu(x):
    return torch.nn.functional.silu(x)
def _sigmoid(x):
    return torch.sigmoid(x)
def _layernorm(x, axis=-1, eps=1e-5):
    m = x.mean(dim=axis, keepdim=True)
    v = x.var(dim=axis, keepdim=True, unbiased=False)
    return (x - m) / torch.sqrt(v + eps)
def _scatter_add(tgt, idx, src, axis=0):
    return tgt.clone().index_add_(axis, idx, src)
def _segment_sum(src, seg, n):
    out = torch.zeros((n,) + src.shape[1:], dtype=src.dtype)
    return out.index_add_(0, seg, src)
def _pad(x, pw):
    flat = tuple(v for pair in reversed(pw) for v in pair)
    return torch.nn.functional.pad(x, flat)

kernel_name = 'gated_mix__mha_block_cached__dense_activation_mish__decode'

def setup_inputs():

    _w = (lambda a: (lambda t: t.to(torch.bfloat16) if t.is_floating_point() else t)(torch.as_tensor(a)))
    def _A_setup():
        B, Sq, D = 2, 1, 576
        H, Sk, Dh = 32, 8192, 128
        return {
            "x": _w((lambda *s: torch.randn(*s, dtype=torch.bfloat16) * 0.05)(B, Sq, D)),
            "k_cache": _w((lambda *s: torch.randn(*s, dtype=torch.bfloat16) * 6.4)(B, H, Sk, Dh)),
            "v_cache": _w((lambda *s: torch.randn(*s, dtype=torch.bfloat16) * 0.2)(B, H, Sk, Dh)),
            "wq": _w((lambda *s: torch.randn(*s, dtype=torch.bfloat16) * 6.4)(D, H * Dh) * (D ** -0.5)),
            "wo": _w((lambda *s: torch.randn(*s, dtype=torch.bfloat16) * 0.2)(H * Dh, D) * ((H * Dh) ** -0.5)),
        }
    _A_in = _A_setup()

    def _B_setup():
        B, S, D, F = 2, 1, 576, 4608
        return {
            "x": _w((lambda *s: torch.randn(*s, dtype=torch.bfloat16) * 0.05)(B, S, D)),
            "w1": _w((lambda *s: torch.randn(*s, dtype=torch.bfloat16) * 3.2)(D, F) * (D ** -0.5)),
            "b1": _w((lambda *s: torch.randn(*s, dtype=torch.bfloat16) * 0.05)(F)),
            "w2": _w((lambda *s: torch.randn(*s, dtype=torch.bfloat16) * 0.05)(F, D) * (F ** -0.5)),
        }
    _B_in = _B_setup()

    return {
        "A_x": _A_in["x"],
        "A_k_cache": _A_in["k_cache"],
        "A_v_cache": _A_in["v_cache"],
        "A_wq": _A_in["wq"],
        "A_wo": _A_in["wo"],
        "B_x": _B_in["x"],
        "B_w1": _B_in["w1"],
        "B_b1": _B_in["b1"],
        "B_w2": _B_in["w2"],
        "gate_w": _w((lambda *s: torch.randn(*s, dtype=torch.bfloat16) * 0.05)(576) * 16.0),
    }

def reference(A_x, A_k_cache, A_v_cache, A_wq, A_wo, B_x, B_w1, B_b1, B_w2, gate_w):
    def _A_ref(x, k_cache, v_cache, wq, wo):
        B, Sq, D = x.shape
        H, Dh = 32, 128
        q = (lambda x, *d: x.permute(*d))((x @ wq).reshape(B, Sq, H, Dh), 0, 2, 1, 3)
        scores = torch.einsum("bhqd,bhkd->bhqk", q, k_cache) * (Dh ** -0.5)
        p = _softmax(scores, axis=-1)
        o = torch.einsum("bhqk,bhkd->bhqd", p, v_cache)
        return (lambda x, *d: x.permute(*d))(o, 0, 2, 1, 3).reshape(B, Sq, H * Dh) @ wo

    def _B_ref(x, w1, b1, w2):
        h = torch.einsum("bsd,df->bsf", x, w1) + b1
        sp = torch.log1p(torch.exp(-torch.abs(h))) + torch.where(h > 0, h, torch.zeros_like(h))
        act = h * torch.tanh(sp)
        return torch.einsum("bsf,fd->bsd", act, w2)

    x = A_x
    g = _sigmoid((x * gate_w).sum(-1, keepdims=True))
    a = _A_ref(x, A_k_cache, A_v_cache, A_wq, A_wo)
    b = _B_ref(x, B_w1, B_b1, B_w2)
    return g * a + (1 - g) * b
```

```python
import sys, math, struct
KN = "gated_mix__mha_block_cached__dense_activation_mish__decode"
HDR = open("cdna_kernels/%s.s.ref" % KN).read().split("\n")[:16]

def f32(x): return "0x%08x" % struct.unpack("<I", struct.pack("<f", x))[0]

WS_Y   = 0
WS_HM  = 0x90000
WS_ML  = 0xB0000
WS_E   = 0xB8000
WS_MK  = 0x140000
WS_LM  = 0xBA000
WS_PM  = 0xC0000
WS_QM  = 0x100000
L_S    = 64
L_QP   = L_S + 8192 + 256
L_FLAG = L_QP + 256
L_O    = L_FLAG + 64
L_T    = 16384
L_ACT  = 65536
L_END  = L_ACT + 4096
NOHOST = 0xC0808080
CSC = f32(math.log2(math.e)/math.sqrt(128))

DESC = """
out = g * (softmax(q K^T / sqrt(128)) V) wo + (1 - g) * mish(x w1 + b1) w2,   q = x wq,  g = sigmoid(x . gate_w)

One workgroup per CU, workgroup = (head, batch, split of 2048 keys); wg & 7 picks four heads, so that under the usual
round-robin placement a head's eight workgroups share a die and its L2 (speed only).
  wave 0   streams every byte the workgroup takes from HBM through one window of about 20 loads: a share of wo (into L2),
           a 48 KiB tile of w1 or w2 (into LDS), then K and V through a ring of 64 AGPR quads.  Scores: dense MFMA with q in
           A.  p*V: sparse MFMA with p = exp2(c*s - c*max) on the diagonal of A.  144 of these waves finally sum the 128
           partial rows of a batch for eight output columns.
  wave 1   partial q (72 rows of wq), exchanged inside the head's group; softmax statistics and weight of the split;
           three arrival tickets that let late workgroups run a wider load window for a while.
  wave 2   a third of one 128-wide slice of an MLP layer.        wave 3   the gate.
  waves 1-3 hold a third of the head's wo each and turn o into this workgroup's partial output row.
Hand-offs through d_ws carry a tag in the low byte of every word (stripped by the reader); the tag is the epoch word found in
d_ws plus a constant, and workgroup 0 stores it back as the next epoch.  Hand-offs inside a head's group stay in L2 only after
the q exchange has shown (die id in the tag) that the whole group sits on one die; otherwise they are written through.
"""

def gen(INFL=20, INFLA=15, INFLB=15, INFLV=18, WIDE=28, PQ=6, PO=2, QB=20, QB1=48, KL=4, CB=8, CH=1, CX=11, KPT=-1, KW=24, INFLK=0, WIDEK=25, TABK='a86421', TABKL='13', NA=12, QTO=24, MLAT=7, PAT=17,
        FB=1, MIX=5, TABP='1.12.21', TABS='a86421.864321.54321', TABL='11.9.5', YB=2, PF=1, YPRE=1, ENDW=2,
        STAMP=0, TDBG=0, DIAG=-1, DMIN=0, DUP=0, NOY=0):
    if DIAG >= 0: STAMP = 2
    o = []
    def a(s): o.append("  " + s)
    def lab(s): o.append(s + ":")
    def cm(s): o.append("  ; " + s)
    def stamp(k):
        if STAMP: a(f"s_memrealtime s[{60+2*k}:{61+2*k}]")
    DPP = "row_mask:0xf bank_mask:0xf"
    o.extend(l for l in HDR if l.startswith(";") and "@launch" not in l)
    o.append(f"; @launch grid=(256,1,1) block=(256,1,1) lds={L_END}")
    o.extend("; " + l for l in DESC.strip("\n").split("\n"))
    o.append('.amdgcn_target "amdgcn-amd-amdhsa--gfx950"')
    o.append(".text"); o.append(f".globl {KN}_kernel"); o.append(".p2align 8"); o.append(f".type {KN}_kernel,@function")

    def ids():
        a("s_lshr_b32 s47, s32, 3")
        a("s_lshl2_add_u32 s33, s31, s47")
        a("s_lshr_b32 s34, s32, 2"); a("s_and_b32 s34, s34, 1")
        a("s_and_b32 s35, s32, 3")
        a("s_lshl_b32 s3, s34, 5"); a("s_add_u32 s3, s3, s33")
    def task():
        a("s_lshr_b32 s47, s32, 3"); a("s_and_b32 s83, s31, 1"); a("s_mul_i32 s83, s83, 3"); a("s_add_u32 s83, s83, s47")
        a("s_lshl2_add_u32 s47, s31, s47"); a("s_lshr_b32 s81, s31, 1"); a("s_add_u32 s81, s81, 32")
        a("s_and_b32 s3, s32, 7"); a("s_cmp_lt_u32 s3, 6"); a("s_cselect_b32 s83, s3, s83"); a("s_cselect_b32 s81, s47, s81")
        a(f"s_bitcmp1_b32 {hex(NOHOST)}, s32"); a("s_cselect_b32 s83, 7, s83")
    def tagbytes():
        a("s_and_b32 s76, s80, 0xff"); a("s_bfe_u32 s77, s80, 0x80008"); a("s_bfe_u32 s78, s80, 0x80010"); a("s_lshr_b32 s79, s80, 24")
    nst = [0]
    def handoff(st):
        nst[0] += 1
        a("s_cmp_eq_u32 s89, 0"); a(f"s_cbranch_scc1 L_far{nst[0]}")
        for x in st: a(x)
        a(f"s_branch L_near{nst[0]}")
        lab(f"L_far{nst[0]}")
        for x in st: a(x + " sc1")
        lab(f"L_near{nst[0]}")
    def tag4(v, vm, t3="s79"):
        for i in range(4): a(f"v_and_or_b32 v{v+i}, v{v+i}, v{vm}, {t3 if i == 3 else 's%d' % (76+i)}")
    def untag(v, n, t, t3="s79", m3=None):
        for k in range(n):
            for i in range(4):
                a(f"v_xor_b32 v{v+4*k+i}, {t3 if i == 3 else 's%d' % (76+i)}, v{v+4*k+i}")
                if i == 3 and m3: a(f"v_and_b32 v{v+4*k+i}, {m3}, v{v+4*k+i}")
        a(f"v_or_b32 v{t}, v{v}, v{v+1}")
        for k in range(2*n-1): a(f"v_or3_b32 v{t}, v{t}, v{v+2+2*k}, v{v+3+2*k}")
        a(f"v_and_b32 v{t}, 0xff, v{t}")
        a(f"v_cmp_ne_u32 vcc, 0, v{t}")
    def wreg(kind, i): return f"a[{4*i}:{4*i+3}]" if kind == "a" else f"v[{64+4*i}:{67+4*i}]"
    def srd(d, base, off, size):
        a(f"s_add_u32 s{d}, s{base}, {off}"); a(f"s_addc_u32 s{d+1}, s{base+1}, 0"); a(f"s_mov_b32 s{d+2}, {size}")

    lab(f"{KN}_kernel")
    a("s_cmpk_ge_u32 s2, 256"); a("s_cbranch_scc1 L_end")
    stamp(0)
    a("s_load_dwordx16 s[4:19], s[0:1], 0")
    a("s_load_dwordx8 s[20:27], s[0:1], 64")
    a("v_readfirstlane_b32 s30, v0")
    a("s_lshr_b32 s32, s2, 3")
    a("s_and_b32 s31, s2, 7")
    a("s_mov_b32 s39, 0x20000")
    a("s_cmp_lt_u32 s30, 64")
    a("s_cbranch_scc0 L_helper")
    cm("wave 0 (streamer): a share of this die's four wo slices is pulled into L2 while q is being made")
    NB = -(-(576 - 27*NA) // 15) * 3
    a("v_lshlrev_b32 v2, 4, v0")
    a(f"s_mov_b32 s43, {hex(NOHOST)}"); a("s_bfm_b32 s3, s32, 0"); a("s_and_b32 s3, s3, s43"); a("s_bcnt1_i32_b32 s3, s3")
    a(f"s_mul_i32 s42, s32, {NA}"); a(f"s_mul_i32 s3, s3, {NB-NA}"); a("s_add_u32 s42, s42, s3")
    a("s_bitcmp1_b32 s43, s32"); a(f"s_cselect_b32 s43, {NB}, {NA}")
    a("s_add_u32 s43, s43, s42"); a("s_lshl_b32 s43, s43, 10"); a("s_lshl_b32 s42, s42, 10")
    a(f"s_mov_b32 s38, {4*128*1152}"); a("s_mul_i32 s3, s31, s38")
    a("s_waitcnt lgkmcnt(0)")
    a("s_add_u32 s36, s12, s3"); a("s_addc_u32 s37, s13, 0")
    lab("L_aloop")
    for j in range(3):
        a(f"s_waitcnt vmcnt({INFLA-1})")
        a(f"buffer_load_dwordx4 v[48:51], v2, s[36:39], s42 offen offset:{j*1024}")
    a("s_addk_i32 s42, 3072")
    a("s_cmp_lt_u32 s42, s43"); a("s_cbranch_scc1 L_aloop")
    a("s_branch L_stream")
    lab("L_helper")
    ids()
    a("s_load_dwordx2 s[28:29], s[0:1], 96")
    a("s_lshr_b32 s30, s30, 6")
    a("v_and_b32 v0, 63, v0")
    a("s_lshl2_add_u32 s44, s3, s35")
    if STAMP:
        for k in range(1, 7): a(f"s_mov_b32 s{60+2*k}, 0")
    if PF:
        a("s_cmp_eq_u32 s30, 3"); a("s_cbranch_scc0 L_nopf")
        a("s_getpc_b64 s[48:49]")
        lab("L_pc")
        a(f"s_mov_b32 s50, L_codeend-L_pc"); a("s_mov_b32 s51, 0x20000")
        a("s_lshl_b32 s3, s32, 7"); a("v_lshl_add_u32 v6, v0, 12, s3")
        a("buffer_load_dword v64, v6, s[48:51], 0 offen")
        lab("L_nopf")
    a("v_lshrrev_b32 v6, 4, v0")
    a("v_and_b32 v7, 15, v0")
    a("v_bfe_u32 v5, v0, 3, 1")
    a("s_mov_b32 s54, 2304"); a("s_mov_b32 s55, 0x20000"); a("s_mov_b32 s59, 0x20000")
    a("s_cmp_eq_u32 s30, 1")
    a("s_cbranch_scc0 L_noq")
    cm("wave 1 (helper 0): loads of a 72-row x 128-column tile of wq and of x")
    a("v_lshlrev_b32 v1, 13, v6"); a("v_lshl_add_u32 v1, v7, 4, v1")
    a("v_mul_u32_u24 v2, 1152, v5")
    a("s_and_b32 s43, s32, 7")
    a("s_mul_i32 s47, s43, 144")
    a(f"s_mul_i32 s3, s43, {72*8192}"); a("s_lshl_b32 s52, s33, 8"); a("s_add_u32 s3, s3, s52")
    a(f"s_sub_u32 s38, {576*8192}, s3")
    a("s_mov_b32 s42, 0"); a("s_mov_b32 s45, 0x8000")
    a("s_waitcnt lgkmcnt(0)")
    a(f"s_load_dword s80, s[28:29], {WS_E}")
    a("s_mov_b32 s52, s4"); a("s_mov_b32 s53, s5")
    a("s_add_u32 s36, s10, s3"); a("s_addc_u32 s37, s11, 0")
    for k in range(9): a(f"buffer_load_dwordx4 v[{64+4*k}:{67+4*k}], v2, s[52:55], s47 offen offset:{16*k}")
    for k in range(18):
        if k >= PQ: a(f"s_waitcnt vmcnt({PQ-1})")
        a(f"buffer_load_dwordx4 {wreg('a', k)}, v1, s[36:39], s42 offen nt")
        if k < 17: a("s_add_u32 s42, s42, s45")
    a("s_branch L_h0b")

    lab("L_stream")
    def slot(j): return f"a[{4*j}:{4*j+3}]"
    def sload(j): a(f"buffer_load_dwordx4 {slot(j)}, v1, s[36:39], s42 offen offset:{(j%4)*1024} nt")
    def snext(j):
        if j % 4 == 3: a("s_add_u32 s42, s42, s46")
        if j % 32 == 31:
            a("s_and_b32 s47, s42, 0x10000"); a("s_mul_i32 s47, s47, 3"); a("s_add_u32 s42, s42, s47"); a("s_and_b32 s42, s42, 0x1fffff")
    cm("this workgroup's MLP weight tile -> LDS")
    task()
    a("s_cbranch_scc1 L_notile")
    a("v_lshrrev_b32 v6, 4, v0"); a(f"s_movk_i32 m0, {L_T}"); a("s_mov_b32 s42, 0")
    a("s_cmp_lt_u32 s83, 3"); a("s_cbranch_scc0 L_tile2")
    cm("192 rows x 128 columns of w1, four rows per load")
    a("v_and_b32 v7, 15, v0"); a("v_mul_u32_u24 v1, 9216, v6"); a("v_lshl_add_u32 v1, v7, 4, v1")
    a("s_lshl_b32 s3, s81, 8"); a(f"s_mul_i32 s47, s83, {192*9216}"); a("s_add_u32 s3, s3, s47")
    a("s_add_u32 s36, s16, s3"); a("s_addc_u32 s37, s17, 0"); a(f"s_sub_u32 s38, {576*9216}, s3")
    a(f"s_mov_b32 s46, {4*9216}"); a("s_mov_b32 s47, s46")
    a("s_branch L_tloop")
    lab("L_tile2")
    cm("128 rows x 192 columns of w2, eight rows x 64 columns per load")
    a("v_bfe_u32 v7, v0, 3, 1"); a("v_lshl_add_u32 v1, v7, 2, v6"); a("v_mul_u32_u24 v1, 1152, v1"); a("v_and_b32 v7, 7, v0"); a("v_lshl_add_u32 v1, v7, 4, v1")
    a(f"s_mul_i32 s3, s81, {128*1152}"); a("s_mul_i32 s47, s83, 384"); a("s_add_u32 s3, s3, s47"); a("s_sub_u32 s3, s3, 1152")
    a("s_add_u32 s36, s20, s3"); a("s_addc_u32 s37, s21, 0"); a(f"s_sub_u32 s38, {4608*1152}, s3")
    a("s_movk_i32 s46, 128"); a(f"s_movk_i32 s47, {9216-256}")
    lab("L_tloop")
    for j in range(3):
        a(f"s_waitcnt vmcnt({INFLB-1})")
        a("buffer_load_dwordx4 v1, s[36:39], s42 offen nt lds")
        a("s_addk_i32 m0, 1024"); a(f"s_add_u32 s42, s42, {'s47' if j == 2 else 's46'}")
    a(f"s_cmp_lt_u32 m0, {L_T+49152}"); a("s_cbranch_scc1 L_tloop")
    lab("L_notile")
    cm(f"K / V: the four splits of a (batch, head) interleave in 64 KiB blocks; start unit (32 KiB) = {CB}*b + {CH}*(h&3) + {CX}*(wg&7)")
    ids()
    a("v_and_b32 v3, 3, v0"); a("v_and_b32 v1, 12, v0"); a("v_lshl_add_u32 v1, v1, 2, v3")
    a("v_lshrrev_b32 v6, 4, v0"); a("v_lshl_add_u32 v1, v6, 2, v1"); a("v_lshlrev_b32 v1, 4, v1")
    a("s_lshl_b32 s3, s3, 5"); a("s_add_u32 s3, s3, s35"); a("s_lshl_b32 s3, s3, 16"); a("s_mov_b32 s38, 0x1d0000")
    a(f"s_mul_i32 s42, s34, {CB}"); a(f"s_mul_i32 s47, s47, {CH}"); a("s_add_u32 s42, s42, s47")
    a(f"s_mul_i32 s46, s31, {CX}"); a("s_add_u32 s42, s42, s46"); a("s_and_b32 s46, s42, 1"); a("s_and_b32 s42, s42, 14"); a("s_lshl2_add_u32 s42, s42, s46"); a("s_lshl_b32 s42, s42, 15")
    a("s_movk_i32 s46, 0x1000")
    a("s_add_u32 s36, s6, s3"); a("s_addc_u32 s37, s7, 0")
    mark = len(o)
    a("s_load_dwordx2 s[28:29], s[0:1], 96")
    if STAMP:
        for k in range(1, 7): a(f"s_mov_b32 s{60+2*k}, 0")
    a("s_add_u32 s40, s8, s3\n  s_addc_u32 s41, s9, 0")
    a("v_lshl_add_u32 v44, v6, 2, v3")
    a("v_lshlrev_b32 v44, 4, v44")
    a("v_lshlrev_b32 v4, 1, v6"); a("v_lshl_add_u32 v4, v3, 4, v4")
    a("v_and_b32 v5, 8, v0"); a("v_add_u32 v4, v4, v5")
    a("v_bfe_u32 v5, v0, 2, 1"); a("v_add_u32 v4, v4, v5")
    a("v_mul_u32_u24 v8, 0x5555, v3")
    a("v_lshlrev_b32 v4, 2, v4"); a(f"v_add_u32 v4, {L_S}, v4")
    a("v_and_b32 v3, 60, v0"); a(f"v_add_u32 v3, {L_S-64}, v3")
    for r in range(16): a(f"v_mov_b32 v{12+r}, 0")
    a("v_mov_b32 v6, 0xff800000")
    for r in range(4): a(f"v_mov_b32 v{32+r}, v6")
    a(f"v_mov_b32 v45, {L_FLAG}"); a("ds_write_b64 v45, v[12:13]")
    if KPT >= 0: a("ds_write_b64 v45, v[12:13] offset:24"); a("v_mov_b32 v46, 0"); a("s_mov_b64 vcc, 0")
    a(f"s_mov_b32 s45, {CSC}")
    a("s_mov_b32 s43, 0")
    setup = o[mark:]; del o[mark:]
    def qtake():
        a("s_waitcnt lgkmcnt(0)\n  s_barrier")
        a(f"ds_read_b128 v[56:59], v44 offset:{L_QP}"); a("ds_read_b32 v9, v45 offset:8")
        a("s_waitcnt lgkmcnt(0)")
        for u in range(4):
            for r in range(4): a(f"v_mov_b32_dpp v{12+4*u+r}, v{56+r} quad_perm:[0,1,2,3] row_mask:0xf bank_mask:{hex(1<<u)}")
    for j in range(64 - KL):
        if j == QB: a("s_barrier")
        if j == QB1:
            assert not setup
            mark = len(o); qtake(); setup = o[mark:]; del o[mark:]
        a(f"s_waitcnt vmcnt({INFL-1})")
        sload(j); snext(j)
        o.extend(setup[:4]); del setup[:4]
    o.extend(setup)
    stamp(1)
    if QB1 >= 64 - KL: qtake()
    if not TDBG: stamp(2)
    def kreduce(D, part):
        if part == 0:
            a(f"v_mov_b32_dpp v5, v{D} quad_perm:[0,0,0,0] {DPP}"); a(f"v_add_f32_dpp v5, v{D+1}, v5 quad_perm:[1,1,1,1] {DPP}")
        else:
            a(f"v_add_f32_dpp v5, v{D+2}, v5 quad_perm:[2,2,2,2] {DPP}"); a(f"v_add_f32_dpp v5, v{D+3}, v5 quad_perm:[3,3,3,3] {DPP}")
    o.append(".p2align 3")
    cm("scores: 64 loads (256 keys) per trip; every slot is refilled with the block after next")
    lab("L_kloop")
    for G in range(16):
        D = 28 + 4*(G & 1); Dp = 28 + 4*((G+1) & 1)
        for u in range(4):
            j = 4*G + u
            a(f"v_mfma_f32_16x16x32_bf16 v[{D}:{D+3}], v[{12+4*u}:{15+4*u}], {slot(j)}, " + ("0" if u == 0 else f"v[{D}:{D+3}]"))
            ji = (j - KL) % 64
            if ji == 0:
                a("s_cmp_eq_u32 s43, 7"); a("s_cbranch_scc0 L_knosw")
                a("s_mov_b32 s36, s40"); a("s_mov_b32 s37, s41"); a("v_mov_b32 v1, v2")
                lab("L_knosw")
            if KPT >= 0:
                a(f"s_waitcnt vmcnt({WIDEK-1})"); a(f"s_cbranch_vccnz L_k{j}")
            a(f"s_waitcnt vmcnt({(INFLK or INFL)-1})")
            if KPT >= 0: lab(f"L_k{j}")
            sload(ji)
            if KPT >= 0 and u == 0:
                if G % 4 == 0: a("ds_read_b32 v42, v45 offset:28")
                if G % 4 == 1: a("s_waitcnt lgkmcnt(0)"); a("v_bfe_u32 v42, v42, v46, 1"); a("v_cmp_ne_u32 vcc, 0, v42")
                if G % 4 == 3: a("v_add_u32 v46, 1, v46"); a("ds_write_b32 v45, v46 offset:24")
            if u == 1: kreduce(Dp, 0)
            if u == 2: kreduce(Dp, 1)
            if u == 3:
                a("v_max_f32 v6, v6, v5"); a(f"ds_write_b32 v3, v5 offset:{G*64}")
            snext(ji)
    a("v_add_u32 v3, 1024, v3")
    a("s_add_u32 s43, s43, 1")
    a("s_cmp_lt_u32 s43, 8")
    a("s_cbranch_scc1 L_kloop")
    tmark = len(o)
    cm("true maximum of this split's scores")
    a("ds_read_b32 v36, v4")
    kreduce(32, 0); kreduce(32, 1)
    a("v_max_f32 v6, v6, v5"); a("ds_write_b32 v3, v5")
    a("v_mov_b32 v46, 1")
    a(f"v_max_f32_dpp v6, v6, v6 row_ror:4 {DPP}")
    a("ds_write_b32 v45, v46")
    a("v_mov_b32 v20, 0")
    a(f"v_max_f32_dpp v6, v6, v6 row_ror:8 {DPP}")
    a("v_mov_b32 v21, 0"); a("v_mov_b32 v22, 0")
    a("v_max_f32_dpp v6, v6, v6 row_bcast:15 row_mask:0xa bank_mask:0xf")
    a("v_mov_b32 v23, 0"); a("v_mov_b32 v24, 0")
    a("v_max_f32_dpp v6, v6, v6 row_bcast:31 row_mask:0xc bank_mask:0xf")
    a("v_mov_b32 v25, 0")
    a("v_readlane_b32 s3, v6, 63")
    a("v_mov_b32 v26, 0"); a("v_mov_b32 v7, s45")
    a("v_mul_f32 v7, s3, v7")
    a("v_mov_b32 v27, 0")
    a("s_mov_b32 s43, 0")
    stamp(3)
    a("s_waitcnt lgkmcnt(0)")
    def psplit(Pn, part):
        if part == 0: a("v_and_b32 v41, 0xffff0000, v36"); a("v_sub_f32 v36, v36, v41")
        else: a(f"v_cvt_pk_bf16_f32 v{Pn}, v36, v41")
    a("v_fma_f32 v36, v36, s45, -v7"); a("v_exp_f32 v36, v36")
    for r in range(8): a(f"v_mov_b32 v{12+r}, 0")
    psplit(37, 0); psplit(37, 1); a("s_mov_b64 vcc, 0"); a("s_nop 0")
    a(f"v_mov_b32_dpp v38, v37 row_half_mirror {DPP}"); a("s_nop 1")
    def abuild(z, c, rr):
        P, Pm = 37 + 2*(z & 1), 38 + 2*(z & 1)
        A = 12 + 4*(c & 1)
        for r in rr:
            src, cc = (P, c) if r in (0, 3) else (Pm, 3 - c)
            a(f"v_mov_b32_dpp v{A+r}, v{src} quad_perm:[{cc},{cc},{cc},{cc}] row_mask:0xf bank_mask:{'0xa' if r & 1 else '0x5'}")
    abuild(0, 0, range(4))
    a("s_nop 1")
    if KL:
        body = o[tmark:]; del o[tmark:]
        step = len(body) // (KL + 1)
        for k in range(KL):
            o.extend(body[k*step:(k+1)*step])
            a(f"s_waitcnt vmcnt({INFL-1})"); sload(64 - KL + k); snext(64 - KL + k)
        o.extend(body[KL*step:])
    wmax = WIDE if FB else INFLV
    nskip = [0]
    def vbody(mode):
        for z in range(4):
            for c in range(4):
                A = 12 + 4*(c & 1)
                last = (mode == "drain" and z == 3)
                nz, nc = (z, c+1) if c < 3 else (z+1, 0)
                Pn = 37 + 2*((z+1) & 1)
                for k in range(4):
                    j = 16*z + 4*c + k
                    if k % 2 == 0:
                        Dv = 20 + 2*k
                        if mode == "drain" and 62 - j <= wmax: a(f"s_waitcnt vmcnt({62-j})")
                        a(f"v_smfmac_f32_16x16x64_bf16 v[{Dv}:{Dv+3}], v[{A}:{A+3}], a[{4*j}:{4*j+7}], v8")
                    if mode == "loop":
                        if FB:
                            nskip[0] += 1
                            a(f"s_waitcnt vmcnt({WIDE-1})"); a(f"s_cbranch_vccnz L_w{nskip[0]}")
                        a(f"s_waitcnt vmcnt({INFLV-1})")
                        if FB: lab(f"L_w{nskip[0]}")
                        sload(j); snext(j)
                    if k < 2 and not (last and c == 3): abuild(nz, nc, (2*k, 2*k+1))
                    if not last:
                        if (c, k) == (0, 2):
                            a(f"ds_read_b32 v36, v4 offset:{(z+1)*256}")
                            if FB and mode == "loop": a("ds_read_b32 v42, v45 offset:4")
                        if (c, k) == (1, 2):
                            a("s_waitcnt lgkmcnt(0)"); a("v_fma_f32 v36, v36, s45, -v7"); a("v_exp_f32 v36, v36")
                            if FB and mode == "loop": a("v_bfe_u32 v42, v42, v46, 1\n  v_cmp_ne_u32 vcc, 0, v42")
                        if (c, k) == (2, 0): psplit(Pn, 0)
                        if (c, k) == (2, 1): psplit(Pn, 1)
                        if (c, k) == (2, 3):
                            if mode == "drain": a("s_nop 0")
                            a(f"v_mov_b32_dpp v{Pn+1}, v{Pn} row_half_mirror {DPP}")
                            if mode == "drain": a("s_nop 0")
                        if (c, k) == (3, 3) and mode == "loop": a("v_add_u32 v46, 1, v46"); a("ds_write_b32 v45, v46")
                    if mode == "drain" and k == 3 and (last or c == 3) and not (last and c == 3): a("s_nop 0")
    o.append(".p2align 3")
    cm("p * V: p sits on the diagonal of a sparse A operand, V is the B operand as it was loaded")
    lab("L_vloop")
    vbody("loop")
    a("v_add_u32 v4, 1024, v4")
    a("s_add_u32 s43, s43, 1")
    a(f"s_cmp_lt_u32 s43, 7")
    a("s_cbranch_scc1 L_vloop")
    if TDBG: stamp(2)
    a("v_bfe_u32 v44, v0, 1, 3"); a("v_and_b32 v45, 1, v0"); a("v_lshl_add_u32 v44, v44, 2, v45")
    a("v_bfe_u32 v45, v0, 4, 1"); a("v_lshl_add_u32 v44, v44, 1, v45"); a("v_lshrrev_b32 v45, 5, v0"); a("v_lshl_add_u32 v44, v44, 2, v45")
    a("v_lshlrev_b32 v44, 3, v44"); a(f"v_add_u32 v44, {L_O}, v44")
    vbody("drain")
    cm("o = rows 0-7 of the first accumulator + rows 8-15 of the second -> LDS")
    a("s_nop 5")
    a("v_permlane32_swap_b32 v20, v21"); a("v_permlane32_swap_b32 v22, v23")
    a("v_permlane32_swap_b32 v24, v25"); a("v_permlane32_swap_b32 v26, v27")
    a("v_add_f32 v20, v20, v25"); a("v_add_f32 v22, v22, v27")
    a("v_cvt_pk_bf16_f32 v20, v20, 0"); a("v_cvt_pk_bf16_f32 v22, v22, 0")
    a("ds_write2_b32 v44, v20, v22 offset0:0 offset1:4"); a("ds_write2_b32 v44, v20, v22 offset0:33 offset1:37")
    stamp(4)
    a("s_waitcnt lgkmcnt(0)")
    a("s_barrier")
    a(f"s_cmp_lt_u32 s32, {0 if NOY else 18}")
    a("s_cbranch_scc0 L_sdone")
    cm("final reduction of 8 output columns: lane pair = head, four loads = its splits")
    a("v_readfirstlane_b32 s80, v9")
    a("s_and_b32 s3, s31, 3"); a("s_mul_i32 s3, s3, 18"); a("s_add_u32 s46, s3, s32")
    a("s_lshr_b32 s47, s31, 2")
    a(f"s_mul_i32 s3, s47, {128*2304}"); a("s_lshl_b32 s48, s46, 5"); a("s_add_u32 s3, s3, s48")
    srd(36, 28, "s3", 128*2304)
    tagbytes()
    a("v_lshrrev_b32 v47, 1, v0"); a("v_and_b32 v46, 1, v0")
    a(f"v_mul_u32_u24 v45, {4*2304}, v47"); a("v_lshl_add_u32 v45, v46, 4, v45")
    a("s_movk_i32 s48, 4608")
    a("s_mov_b32 s49, 0x100000")
    a("v_lshrrev_b32 v44, 5, v0"); a("v_bfe_u32 v47, v0, 4, 1")
    a("v_lshl_add_u32 v44, v47, 1, v44"); a("v_lshl_add_u32 v44, v46, 2, v44"); a("v_lshlrev_b32 v44, 1, v44")
    a("s_mul_i32 s3, s47, 1152"); a("s_lshl_b32 s46, s46, 4"); a("s_add_u32 s3, s3, s46")
    srd(52, 24, "s3", 16); a("s_mov_b32 s55, 0x20000")
    srd(56, 28, WS_E, 4); a("s_mov_b32 s59, 0x20000"); a("v_lshlrev_b32 v43, 2, v0")
    a("s_mov_b32 s50, 0x00030003"); a("s_mov_b32 s51, 0x00030003")
    if YB: a("s_barrier")
    lab("L_ypoll")
    for k in range(4): a(f"buffer_load_dwordx4 v[{56+4*k}:{59+4*k}], v45, s[36:39], {'s48' if k >= 2 else '0'} offen offset:{2304*(k&1)} sc1")
    a("s_sub_u32 s49, s49, 1")
    a("s_waitcnt vmcnt(0)")
    a("s_cbranch_scc1 L_yok")
    untag(56, 4, 47)
    a("s_and_b64 exec, vcc, vcc")
    a("s_cbranch_scc1 L_ypoll")
    lab("L_yok")
    a("s_mov_b64 exec, -1")
    stamp(5)
    for i in range(4): a(f"v_add_f32 v{56+i}, v{56+i}, v{60+i}")
    for i in range(4): a(f"v_add_f32 v{64+i}, v{64+i}, v{68+i}")
    for i in range(4): a(f"v_add_f32 v{56+i}, v{56+i}, v{64+i}")
    a("s_nop 0")
    a("v_permlane32_swap_b32 v56, v57"); a("v_permlane32_swap_b32 v58, v59")
    a("v_add_f32 v56, v56, v57"); a("v_add_f32 v58, v58, v59")
    a("s_nop 1")
    a("v_permlane16_swap_b32 v56, v58")
    a("v_add_f32 v56, v56, v58")
    for d in (8, 4, 2):
        a("s_nop 1"); a(f"v_add_f32_dpp v56, v56, v56 row_ror:{d} {DPP}")
    a("v_cvt_pk_bf16_f32 v56, v56, v56")
    a("s_mov_b64 exec, s[50:51]")
    a("buffer_store_short v56, v44, s[52:55], 0 offen")
    cm("all of batch 0 has delivered, so every workgroup has sent its partial q and read the epoch: workgroup 0 moves it on")
    a("s_cmp_eq_u32 s2, 0"); a("s_cbranch_scc0 L_sdone")
    a("buffer_store_dword v9, v43, s[56:59], 0 offen")
    lab("L_sdone")
    if DIAG >= 0:
        a("s_cmp_lt_u32 s32, 18"); a("s_cbranch_scc1 L_db"); a("s_barrier"); lab("L_db")
        a("s_mov_b64 exec, -1"); a("s_waitcnt vmcnt(0)"); stamp(6); a("s_waitcnt lgkmcnt(0)")
        a("s_not_b32 s3, s60"); a("v_mov_b32 v7, s3"); a("v_mov_b32 v6, 0")
        c = 60 + 2*min(DIAG, 6)
        if DMIN: a(f"s_not_b32 s3, s{c}"); a("v_mov_b32 v8, s3")
        else: a(f"v_mov_b32 v8, s{c}")
        lab("L_d0")
        a("s_memrealtime s[82:83]"); a("s_waitcnt lgkmcnt(0)"); a("s_sub_u32 s82, s82, s60"); a(f"s_cmp_lt_u32 s82, 6000"); a("s_cbranch_scc1 L_d0")
        a("s_mov_b64 exec, 1")
        a("global_atomic_umax v6, v7, s[26:27] sc1"); a("global_atomic_umax v6, v8, s[26:27] offset:4 sc1")
        a("s_cmp_eq_u32 s2, 0"); a("s_cbranch_scc0 L_end")
        lab("L_d1")
        a("s_memrealtime s[82:83]"); a("s_waitcnt lgkmcnt(0)"); a("s_sub_u32 s82, s82, s60"); a(f"s_cmp_lt_u32 s82, 8500"); a("s_cbranch_scc1 L_d1")
        a("global_load_dwordx2 v[8:9], v6, s[26:27] sc1"); a("s_waitcnt vmcnt(0)")
        a("v_readfirstlane_b32 s3, v8"); a("v_readfirstlane_b32 s48, v9"); a("s_nop 3"); a("s_not_b32 s3, s3")
        if DMIN: a("s_not_b32 s48, s48")
        a("s_sub_u32 s48, s48, s3"); a("s_min_u32 s48, s48, 10000"); a(f"s_mul_i32 s48, s48, {0 if DIAG == 7 else 4}"); a("s_add_u32 s48, s48, 10000")
        lab("L_d2")
        a("s_memrealtime s[82:83]"); a("s_waitcnt lgkmcnt(0)"); a("s_sub_u32 s82, s82, s3"); a(f"s_cmp_lt_u32 s82, s48"); a("s_cbranch_scc1 L_d2")
    def stamp_out():
        if STAMP != 1: return
        a("s_mov_b64 exec, -1")
        a("s_waitcnt vmcnt(0)")
        stamp(6)
        a("s_getreg_b32 s3, hwreg(HW_REG_XCC_ID)"); a("s_and_b32 s3, s3, 15"); a("s_lshl_b32 s48, s30, 4"); a("s_or_b32 s3, s3, s48")
        a("s_waitcnt lgkmcnt(0)")
        for k in range(7): a(f"v_mov_b32 v{48+k}, s{60+2*k}")
        a("v_mov_b32 v55, s3")
        a("s_lshl_b32 s3, s30, 8"); a("s_add_u32 s3, s3, s2"); a("s_lshl_b32 s3, s3, 5"); a("s_add_u32 s3, s3, 0x10000000")
        srd(36, 28, "s3", 32)
        a("v_mov_b32 v44, 0"); a("s_mov_b64 exec, 1")
        a("buffer_store_dwordx4 v[48:51], v44, s[36:39], 0 offen"); a("buffer_store_dwordx4 v[52:55], v44, s[36:39], 0 offen offset:16")
    stamp_out()
    lab("L_end")
    a("s_endpgm")

    def xstage_math(kind, n, wait=True):
        def ab(s):
            for r in range(4): a(f"v_perm_b32 v{20+4*(s&1)+r}, v{65+2*s}, v{64+2*s}, v{12+r}")
        if wait: a(f"s_waitcnt vmcnt({n})")
        ab(0)
        for s in range(n):
            if s < n-1: ab(s+1)
            if wait: a(f"s_waitcnt vmcnt({n-1-s})")
            elif s == n-1: a("s_nop 0")
            A = 20 + 4*(s & 1)
            a(f"v_mfma_f32_16x16x32_bf16 v[28:31], v[{A}:{A+3}], {wreg(kind, s)}, " + ("0" if s == 0 else "v[28:31]"))
    def wave_reduce(op, v):
        for d in ("row_ror:1", "row_ror:2", "row_ror:4", "row_ror:8"):
            a("s_nop 1"); a(f"{op}_dpp v{v}, v{v}, v{v} {d} {DPP}")
        a("s_nop 1"); a(f"{op}_dpp v{v}, v{v}, v{v} row_bcast:15 row_mask:0xa bank_mask:0xf")
        a("s_nop 1"); a(f"{op}_dpp v{v}, v{v}, v{v} row_bcast:31 row_mask:0xc bank_mask:0xf")
        a("s_nop 1")
    def gate_loads():
        a("s_mul_i32 s3, s34, 1152"); srd(52, 4, "s3", 1152)
        srd(48, 22, 0, 1152); a("s_mov_b32 s51, 0x20000")
        a("v_lshlrev_b32 v19, 5, v0")
        a("buffer_load_dwordx4 v[68:71], v19, s[52:55], 0 offen"); a("buffer_load_dwordx4 v[72:75], v19, s[52:55], 0 offen offset:16")
        a("buffer_load_dwordx4 v[76:79], v19, s[48:51], 0 offen"); a("buffer_load_dwordx4 v[80:83], v19, s[48:51], 0 offen offset:16")
    def gate_math():
        a("v_mov_b32 v19, 0")
        a("s_waitcnt vmcnt(0)")
        for k in range(8):
            a(f"v_lshlrev_b32 v6, 16, v{68+k}"); a(f"v_lshlrev_b32 v7, 16, v{76+k}"); a("v_fmac_f32 v19, v6, v7")
            a(f"v_and_b32 v6, 0xffff0000, v{68+k}"); a(f"v_and_b32 v7, 0xffff0000, v{76+k}"); a("v_fmac_f32 v19, v6, v7")
        wave_reduce("v_add_f32", 19)
        a("v_readlane_b32 s3, v19, 63"); a(f"v_mov_b32 v19, {f32(-math.log2(math.e))}"); a("s_nop 0")
        a("v_mul_f32 v19, s3, v19"); a("v_exp_f32 v19, v19"); a("s_nop 0"); a("v_add_f32 v19, 1.0, v19"); a("v_rcp_f32 v19, v19")
    def b1_load():
        a("s_lshl_b32 s3, s81, 8"); srd(52, 18, "s3", 256)
        a("v_bfe_u32 v9, v0, 4, 1"); a("v_and_b32 v10, 15, v0"); a("v_lshlrev_b32 v9, 3, v9"); a("v_lshl_add_u32 v9, v10, 4, v9")
        a("buffer_load_dwordx2 v[10:11], v9, s[52:55], 0 offen")
    def lane_consts():
        a("v_lshl_add_u32 v5, v5, 2, v6")
        a("v_mul_u32_u24 v3, 1152, v5"); a("v_and_b32 v4, 7, v0"); a("v_lshl_add_u32 v3, v4, 4, v3")
        a("v_lshrrev_b32 v5, 5, v0"); a("v_bfe_u32 v7, v0, 2, 1"); a("v_lshl_add_u32 v5, v7, 1, v5")
        a("v_bfe_u32 v7, v0, 3, 1"); a("v_lshl_add_u32 v5, v5, 1, v7"); a("v_bfe_u32 v7, v0, 4, 1"); a("v_lshl_add_u32 v5, v5, 1, v7"); a("v_lshlrev_b32 v5, 4, v5")
        a("v_and_b32 v16, 3, v0"); a("v_mul_u32_u24 v16, 0x5555, v16")
        a("v_lshlrev_b32 v4, 5, v4"); a("v_bfe_u32 v6, v0, 4, 1"); a("v_lshl_add_u32 v4, v6, 4, v4")
        a("v_lshrrev_b32 v6, 5, v0"); a("v_bfe_u32 v7, v0, 3, 1"); a("v_lshl_add_u32 v6, v7, 1, v6"); a("v_lshl_add_u32 v4, v6, 8, v4")
        a("v_and_b32 v6, 1, v0"); a("v_lshlrev_b32 v6, 4, v6"); a("v_mov_b32 v7, 0xffff"); a("v_lshlrev_b32 v6, v6, v7")
        a("v_lshrrev_b32 v7, 4, v0"); a("s_mov_b32 s3, 0x02020202"); a("v_mul_lo_u32 v7, s3, v7"); a("v_add_u32 v7, 0x01000100, v7")
        a("s_mov_b32 s3, 0x0c0c0c0c"); a("v_bfi_b32 v6, v6, v7, s3"); a("v_mov_b32 v8, s3")
        a("v_bfe_u32 v7, v0, 1, 2")
        for r in range(4):
            a(f"v_cmp_eq_u32 vcc, {r}, v7"); a("s_nop 1"); a(f"v_cndmask_b32 v{12+r}, v8, v6, vcc")
    o.append(".p2align 6")
    lab("L_h0b")
    cm("helper 0: partial q of both batches, exchanged between the workgroups that share the head")
    lane_consts()
    srd(56, 28, WS_QM, 0x40000)
    a("s_lshl_b32 s3, s33, 3"); a("s_add_u32 s3, s3, s43"); a("s_lshl_b32 s3, s3, 10"); a("v_lshl_add_u32 v51, v0, 4, s3")
    a("v_and_b32 v50, 31, v0"); a("s_lshl_b32 s3, s33, 4"); a("s_add_u32 s3, s3, s34"); a("s_lshl_b32 s3, s3, 9"); a("v_lshl_add_u32 v50, v50, 4, s3")
    a("v_lshrrev_b32 v49, 5, v0"); a("v_lshl_add_u32 v50, v49, 10, v50")
    a("v_and_b32 v6, 15, v0"); a("v_bfe_u32 v7, v0, 4, 1"); a("v_lshlrev_b32 v6, 4, v6"); a("v_lshl_add_u32 v6, v7, 3, v6")
    a("v_lshl_add_u32 v6, v49, 2, v6")
    a("s_waitcnt lgkmcnt(0)")
    a("s_add_u32 s80, s80, 0x11010101")
    tagbytes()
    cm("the last tag byte of a partial q carries the id of the die that wrote it")
    a("s_getreg_b32 s42, hwreg(HW_REG_XCC_ID, 0, 4)"); a("s_and_b32 s45, s79, 0xf0"); a("s_or_b32 s45, s45, s42")
    xstage_math("a", 18)
    a("s_movk_i32 s3, 0x1000"); a(f"s_mov_b32 s47, {QTO}"); a("v_mov_b32 v7, 0xffffff00"); a("v_mov_b32 v52, s80"); a("v_mov_b32 v53, 1"); a("s_nop 2")
    def qloads():
        for k in range(4): a(f"buffer_load_dwordx4 v[{64+4*k}:{67+4*k}], v50, s[56:59], {'s3' if k >= 2 else '0'} offen offset:{2048*(k&1)} sc1")
    tag4(28, 7, "s45")
    a("buffer_store_dwordx4 v[28:31], v51, s[56:59], 0 offen")
    stamp(5)
    if QB >= 0: a("s_barrier")
    lab("L_qpoll")
    qloads()
    a("s_sub_u32 s47, s47, 1")
    a("s_waitcnt vmcnt(0)")
    a("s_cbranch_scc1 L_qfar")
    untag(64, 4, 7, "s45")
    a("s_cbranch_vccnz L_qpoll")
    lab("L_qok")
    for i in range(4): a(f"v_add_f32 v{64+i}, v{64+i}, v{68+i}")
    for i in range(4): a(f"v_add_f32 v{72+i}, v{72+i}, v{76+i}")
    for i in range(4): a(f"v_add_f32 v{64+i}, v{64+i}, v{72+i}")
    a(f"v_mov_b32 v7, {L_FLAG}")
    a("v_permlane32_swap_b32 v64, v66"); a("v_permlane32_swap_b32 v65, v67")
    a("v_add_f32 v64, v64, v66"); a("v_add_f32 v65, v65, v67")
    a("v_cvt_pk_bf16_f32 v64, v64, v65")
    a(f"ds_write_b32 v6, v64 offset:{L_QP}"); a("ds_write_b64 v7, v[52:53] offset:8")
    a("s_branch L_hbar1")
    lab("L_qfar")
    cm("not all eight pieces came from this die (then none of the eight workgroups passes the test above): write through, accept any die")
    a("buffer_store_dwordx4 v[28:31], v51, s[56:59], 0 offen sc1")
    a("s_mov_b32 s47, 0x40000"); a("v_mov_b32 v53, 0")
    lab("L_qpoll2")
    qloads()
    a("s_sub_u32 s47, s47, 1")
    a("s_waitcnt vmcnt(0)")
    a("s_cbranch_scc1 L_qok")
    untag(64, 4, 7, "s45", "-16")
    a("s_cbranch_vccnz L_qpoll2")
    a("s_branch L_qok")
    lab("L_noq")
    a("s_waitcnt lgkmcnt(0)")
    a("s_cmp_eq_u32 s30, 3"); a("s_cbranch_scc0 L_pre1")
    cm("helper 2: gate of this batch")
    if YPRE:
        a("s_mul_i32 s3, s44, 2304"); srd(56, 28, "s3", 2304)
        a("v_lshlrev_b32 v40, 7, v0")
        a("buffer_load_dword v44, v40, s[56:59], 0 offen")
    gate_loads()
    lane_consts()
    gate_math()
    a(f"v_mov_b32 v7, {L_FLAG}"); a("ds_write_b32 v7, v19 offset:16")
    a("s_branch L_pre2")
    lab("L_pre1")
    task(); b1_load()
    if FB:
        a("s_cmp_eq_u32 s31, 0"); a("s_cbranch_scc0 L_nozero")
        a("s_lshl_b32 s3, s32, 8"); a(f"s_add_u32 s3, s3, {WS_MK}"); srd(56, 28, "s3", 0x6004)
        a("v_lshlrev_b32 v40, 13, v0"); a("v_mov_b32 v41, 0")
        a("buffer_store_dword v41, v40, s[56:59], 0 offen sc1")
        lab("L_nozero")
    lane_consts()
    for i in range(4): a(f"v_mov_b32 v{40+i}, 0")
    a("v_lshlrev_b32 v6, 4, v0"); a(f"ds_write_b128 v6, v[40:43] offset:{L_O}"); a(f"ds_write_b128 v6, v[40:43] offset:{L_O+1024}")
    lab("L_pre2")
    if QB >= 0: a("s_barrier")
    lab("L_hbar1")
    stamp(1)
    a("s_waitcnt vmcnt(0) lgkmcnt(0)")
    a("s_barrier")
    a(f"v_mov_b32 v17, {L_FLAG}")
    a("ds_read_b64 v[6:7], v17 offset:8"); a("ds_read_b32 v19, v17 offset:16")
    a("s_sub_u32 s46, s30, 1")
    a("s_mov_b32 s52, s4"); a("s_mov_b32 s53, s5"); a("s_mov_b32 s54, 2304")
    a("s_mov_b32 s51, 0x20000")
    a("s_waitcnt lgkmcnt(0)")
    a("v_readfirstlane_b32 s80, v6"); a("v_readfirstlane_b32 s89, v7")
    a("v_lshlrev_b32 v1, 4, v0")
    tagbytes()
    def wslot(i): return (3*(i//6) + i % 3)*2 + (i//3) % 2
    def wstage_init():
        for i in range(12): a(f"v_mov_b32 v{28+i}, 0")
        a("v_mov_b32 v7, 0xffffff00")
    def wstage_math(kind, ldsoff, final=False):
        areg = [40, 44, 48, 52, 56, 60, 20, 24]
        for k in range(8): a(f"ds_read_b128 v[{areg[k]}:{areg[k]+3}], v5 offset:{ldsoff+256*k}")
        if final: a("ds_read_b32 v6, v17 offset:20")
        for k in range(8):
            a(f"s_waitcnt lgkmcnt({7-k+final})")
            for t in range(3):
                D = 28 + 4*t; B = 8*(3*k + t) + (64 if kind == "v" else 0)
                a(f"v_smfmac_f32_16x16x64_bf16 v[{D}:{D+3}], v[{areg[k]}:{areg[k]+3}], {kind}[{B}:{B+7}], v16")
        a("s_waitcnt lgkmcnt(0)"); a("s_nop 5")
        for i in range(4): a(f"v_permlane32_swap_b32 v{28+i}, v{32+i}")
        for i in range(4): a(f"v_permlane32_swap_b32 v{36+i}, v{20+i}")
        for i in range(4): a(f"v_add_f32_dpp v{28+i}, v{32+i}, v{28+i} row_ror:8 row_mask:0xf bank_mask:0x3")
        for i in range(4): a(f"v_add_f32_dpp v{28+i}, v{36+i}, v{20+i} row_ror:8 row_mask:0xf bank_mask:0xc")
        if final:
            for i in range(4): a(f"v_fma_f32 v{28+i}, v{28+i}, v6, v{12+i}")
        tag4(28, 7)
    def wait_progress(tag, val, nap, off=0):
        a("s_mov_b32 s43, 0x400000")
        lab(f"L_{tag}wait")
        a(f"s_sleep {nap}")
        a(f"ds_read_b32 v7, v17 offset:{off}"); a("s_sub_u32 s43, s43, 1"); a("s_waitcnt lgkmcnt(0)"); a(f"s_cbranch_scc1 L_{tag}done")
        a(f"v_cmp_gt_u32 vcc, {val}, v7"); a(f"s_cbranch_vccnz L_{tag}wait")
        lab(f"L_{tag}done")
    def poll(tag, loads, v, n):
        a("s_mov_b32 s43, 0x40000")
        lab(f"L_{tag}wait")
        loads()
        a("s_sub_u32 s43, s43, 1")
        a("s_waitcnt vmcnt(0)")
        a(f"s_cbranch_scc1 L_{tag}done")
        untag(v, n, 7)
        a(f"s_cbranch_vccz L_{tag}done")
        a("s_sleep 16"); a(f"s_branch L_{tag}wait")
        lab(f"L_{tag}done")
    loc = [x.endswith("l") for x in TABP.split(".")]
    pts = [int(x.rstrip("l")) for x in TABP.split(".")]; tabs = [x.ljust(8, "0") for x in TABS.split(".")]; lens = [int(x) for x in TABL.split(".")]
    assert all(l or r < 3 for r, l in enumerate(loc))
    def arrive(r, tab=None, Lp=None, off=0):
        last = tab is None and r == len(pts)-1
        if tab is None: tab, Lp = tabs[r], lens[r]
        if off == 0 and loc[r]:
            a("s_lshl_b32 s88, s31, 7"); a(f"s_add_u32 s88, s88, {WS_LM + r*1024}"); srd(56, 28, "s88", 128)
            a("s_lshl_b32 s88, s32, 2"); a("v_lshlrev_b32 v6, 7, v0"); a("v_mov_b32 v7, s80"); a("v_lshlrev_b32 v45, 2, v0")
            a("buffer_store_dword v7, v6, s[56:59], s88 offen")
            a("buffer_load_dword v45, v45, s[56:59], 0 offen sc1")
            a("s_waitcnt vmcnt(0)")
            a("v_cmp_eq_u32 vcc, s80, v45"); a("s_bcnt1_i32_b32 s88, vcc_lo"); a("s_max_u32 s88, s88, 1"); a("s_sub_u32 s88, s88, 1"); a("s_lshr_b32 s88, s88, 2")
        else:
            a(f"s_mul_i32 s88, s31, {MIX*(r+1)}"); a("s_add_u32 s88, s88, s32"); a("s_and_b32 s88, s88, 31"); a("s_lshl_b32 s88, s88, 8")
            a(f"s_add_u32 s88, s88, {WS_MK + r*8192}"); a("s_add_u32 s86, s28, s88"); a("s_addc_u32 s87, s29, 0")
            a("s_mov_b32 s88, 1"); a("s_atomic_add s88, s[86:87], 0 glc")
            a("s_waitcnt lgkmcnt(0)")
        a(f"ds_read_b32 v7, v17 offset:{off}")
        a("s_min_u32 s88, s88, 7")
        load = [0]*Lp; pat = [0]*8
        for rank in range(7, -1, -1):
            N = min(int(tab[7-rank], 16), Lp)
            best = None
            for ph in range(Lp):
                bits = [i for i in range(Lp) if ((i+1)*N + ph)//Lp > (i*N + ph)//Lp]
                cost = sum(load[i] for i in bits) + 1e-3*sum(bits)
                if best is None or cost < best[0]: best = (cost, bits)
            for i in best[1]: load[i] += 1; pat[rank] |= 1 << i
        for k in range(4): a(f"s_mov_b32 s{90+k}, {hex(pat[2*k] | pat[2*k+1] << 16)}")
        a("s_cmp_lt_u32 s88, 4"); a("s_cselect_b64 s[90:91], s[90:91], s[92:93]"); a("s_lshl_b32 s88, s88, 4"); a("s_lshr_b64 s[90:91], s[90:91], s88")
        a("s_and_b32 s88, s90, 0xffff"); a("s_lshl_b32 s88, s88, 1")
        a("s_waitcnt lgkmcnt(0)")
        a("v_lshlrev_b32 v7, v7, s88")
        if ENDW and last: a(f"v_or_b32 v7, {hex(((1 << ENDW) - 1) << (29 - ENDW))}, v7")
        a(f"ds_write_b32 v17, v7 offset:{off+4}")
    def tile_to_regs(kind):
        for k in range(48): a(f"ds_read_b128 {wreg(kind, k if kind == 'a' else wslot(k))}, v1 offset:{L_T+1024*k}")
        a("s_waitcnt lgkmcnt(0)")
    task()
    a("s_mul_i32 s3, s81, 3072"); a(f"s_add_u32 s3, s3, {WS_HM}"); srd(48, 28, "s3", 3072)
    a("s_cmp_eq_u32 s46, 1"); a("s_cselect_b32 s83, s83, 7")
    a("s_cmp_lt_u32 s83, 3"); a("s_cbranch_scc0 L_wo")
    cm("helper 1, first layer: partial h of both batches")
    a("v_bfe_u32 v7, v0, 3, 1"); a("v_mul_u32_u24 v2, 1152, v7")
    a("s_mul_i32 s47, s83, 384")
    for k in range(24): a(f"buffer_load_dwordx4 v[{64+4*k}:{67+4*k}], v2, s[52:55], s47 offen offset:{16*k}")
    tile_to_regs("a")
    a("s_waitcnt vmcnt(0)")
    xstage_math("a", 48, False)
    a("v_mov_b32 v7, 0xffffff00"); a("s_nop 6")
    tag4(28, 7)
    a("s_lshl_b32 s3, s83, 10")
    a("s_cmp_lt_u32 s81, 32"); a("s_cselect_b32 s89, s89, 0")
    handoff(["buffer_store_dwordx4 v[28:31], v1, s[48:51], s3 offen"])
    lab("L_wo")
    cm("all helpers: 128 rows x 192 columns of this head's wo -> a[0:191]")
    a(f"s_mul_i32 s3, s33, {128*1152}"); a("s_mul_i32 s47, s46, 384"); a("s_add_u32 s3, s3, s47")
    a("s_add_u32 s36, s12, s3"); a("s_addc_u32 s37, s13, 0"); a(f"s_sub_u32 s38, {4096*1152}, s3")
    a("s_mov_b32 s42, 0"); a("s_movk_i32 s3, 9216")
    for s in range(16):
        for t in range(3):
            i = 3*s + t
            if KPT >= 0 and i == KW:
                a("s_cmp_eq_u32 s46, 2"); a("s_cbranch_scc0 L_nok")
                wait_progress("j", KPT, 1, 24)
                arrive(3, TABK.ljust(8, "0"), int(TABKL), 24)
                lab("L_nok")
            if i >= PO: a(f"s_waitcnt vmcnt({PO-1})")
            a(f"buffer_load_dwordx4 {wreg('a', wslot(i))}, v3, s[36:39], s42 offen offset:{t*128}")
        if s < 15: a("s_add_u32 s42, s42, s3")
    stamp(2)
    a("s_cmp_eq_u32 s46, 1"); a("s_cbranch_scc1 L_h1")
    a("s_cmp_eq_u32 s46, 2"); a("s_cbranch_scc1 L_hjoin")
    cm("helper 0: softmax statistics (m, l) of this split; load-window control")
    wait_progress("k", 1, 2)
    if FB and pts[0] == 1: arrive(0)
    for k in range(8): a(f"ds_read_b128 v[{64+4*k}:{67+4*k}], v1 offset:{L_S+1024*k}")
    a(f"s_mov_b32 s45, {CSC}")
    a("s_lshl_b32 s3, s44, 7"); a(f"s_add_u32 s3, s3, {WS_ML}"); srd(48, 28, "s3", 16)
    a("s_waitcnt lgkmcnt(0)")
    a("v_max_f32 v40, v64, v65")
    for k in range(15): a(f"v_max3_f32 v40, v40, v{66+2*k}, v{67+2*k}")
    wave_reduce("v_max_f32", 40)
    a("v_readlane_b32 s3, v40, 63"); a("v_mov_b32 v40, s45"); a("s_nop 0"); a("v_mul_f32 v40, s3, v40")
    for k in range(32): a(f"v_fma_f32 v{64+k}, v{64+k}, s45, -v40")
    for k in range(32): a(f"v_exp_f32 v{64+k}, v{64+k}")
    a("v_add_f32 v41, v64, v65")
    for k in range(2, 32): a(f"v_add_f32 v41, v41, v{64+k}")
    wave_reduce("v_add_f32", 41)
    a("v_mov_b32 v7, 0xffffff00")
    a("v_and_b32 v42, v7, v40"); a("v_and_b32 v43, v7, v41"); a("v_sub_f32 v42, v40, v42"); a("v_sub_f32 v43, v41, v43")
    a("v_mov_b32 v44, v40")
    tag4(40, 7)
    a("v_sub_u32 v6, 63, v0"); a("v_lshlrev_b32 v6, 4, v6")
    handoff(["buffer_store_dwordx4 v[40:43], v6, s[48:51], 0 offen"])
    cm("weight of this split among the four of its (batch, head): gate * exp2(m - max) / sum")
    wait_progress("m", MLAT, 4)
    a("s_andn2_b32 s3, s44, 3"); a("s_lshl_b32 s3, s3, 7"); a(f"s_add_u32 s3, s3, {WS_ML}"); srd(48, 28, "s3", 512)
    a("v_and_b32 v6, 3, v0"); a("v_lshlrev_b32 v6, 7, v6")
    poll("n", lambda: a("buffer_load_dwordx4 v[40:43], v6, s[48:51], 0 offen sc1"), 40, 1)
    a("v_add_f32 v40, v40, v42"); a("v_add_f32 v41, v41, v43"); a("s_nop 0")
    a(f"v_max_f32_dpp v42, v40, v40 quad_perm:[1,0,3,2] {DPP}"); a("s_nop 1"); a(f"v_max_f32_dpp v42, v42, v42 quad_perm:[2,3,0,1] {DPP}")
    a("v_sub_f32 v40, v40, v42"); a("v_sub_f32 v44, v44, v42"); a("v_exp_f32 v40, v40"); a("v_exp_f32 v44, v44")
    a("v_mul_f32 v41, v41, v40"); a("v_mul_f32 v44, v44, v19"); a("s_nop 0")
    a(f"v_add_f32_dpp v41, v41, v41 quad_perm:[1,0,3,2] {DPP}"); a("s_nop 1"); a(f"v_add_f32_dpp v41, v41, v41 quad_perm:[2,3,0,1] {DPP}")
    a("v_rcp_f32 v41, v41"); a("s_nop 0"); a("v_mul_f32 v44, v44, v41")
    a("ds_write_b32 v17, v44 offset:20")
    if FB:
        for r, pt in enumerate(pts):
            if pt == 1: continue
            wait_progress(f"c{r}", pt, 1)
            arrive(r)
    a("s_branch L_hjoin")
    lab("L_h1")
    a("s_sub_u32 s45, s83, 3")
    a("s_cmp_lt_u32 s45, 3"); a("s_cbranch_scc0 L_hjoin")
    cm("helper 1, second layer: mish(h + b1) times 128 rows x 192 columns of w2, both batches")
    tile_to_regs("v")
    def hm_loads():
        for k in range(3): a(f"buffer_load_dwordx4 v[{40+4*k}:{43+4*k}], v1, s[48:51], 0 offen offset:{1024*k} sc1")
    poll("h", hm_loads, 40, 3)
    a("v_lshlrev_b32 v28, 16, v10"); a("v_and_b32 v29, 0xffff0000, v10"); a("v_lshlrev_b32 v30, 16, v11"); a("v_and_b32 v31, 0xffff0000, v11")
    for k in range(3):
        for i in range(4): a(f"v_add_f32 v{28+i}, v{28+i}, v{40+4*k+i}")
    cm("mish(h) = h*tanh(softplus(h)); with t = exp(-|h|): h>0: (1+2t)/(1+2t+2t^2)   h<=0: (t^2+2t)/(t^2+2t+2)")
    a(f"s_mov_b32 s3, {f32(-math.log2(math.e))}")
    for i in range(4): a(f"v_mul_f32 v{40+i}, s3, abs(v{28+i})")
    for i in range(4): a(f"v_exp_f32 v{40+i}, v{40+i}")
    a("s_nop 0")
    for i in range(4):
        a(f"v_mul_f32 v44, v{40+i}, v{40+i}")
        a(f"v_cmp_lt_f32 vcc, 0, v{28+i}")
        a(f"v_add_f32 v45, v{40+i}, v{40+i}")
        a("s_nop 0")
        a("v_cndmask_b32 v46, v44, 1.0, vcc")
        a("v_cndmask_b32 v47, 1.0, v44, vcc")
        a("v_add_f32 v46, v46, v45")
        a("v_fma_f32 v47, v47, 2.0, v46")
        a("v_rcp_f32 v47, v47")
        a(f"v_mul_f32 v46, v46, v{28+i}")
        a("v_mul_f32 v46, v46, v47")
        a("v_and_b32 v47, 0xffff0000, v46"); a("v_sub_f32 v46, v46, v47")
        a(f"v_cvt_pk_bf16_f32 v{49+2*i}, v46, v47")
    a("v_lshrrev_b32 v6, 5, v0"); a("v_bfe_u32 v7, v0, 1, 3"); a("v_lshl_add_u32 v6, v6, 3, v7"); a("v_and_b32 v7, 1, v0"); a("v_lshl_add_u32 v6, v6, 2, v7")
    a("v_bfe_u32 v7, v0, 4, 1"); a("v_lshl_add_u32 v6, v6, 1, v7"); a("v_lshlrev_b32 v6, 5, v6"); a(f"v_add_u32 v6, {L_ACT}, v6")
    for i in range(4): a(f"v_mov_b32 v{48+2*i}, 0"); a(f"v_mov_b32 v{56+2*i}, v{49+2*i}"); a(f"v_mov_b32 v{57+2*i}, 0")
    a("ds_write_b128 v6, v[56:59]"); a("ds_write_b128 v6, v[60:63] offset:16"); a("ds_write_b128 v6, v[48:51] offset:128"); a("ds_write_b128 v6, v[52:55] offset:144")
    cm("the piece of batch b goes to the workgroup (b, this head, this split)")
    a("s_and_b32 s3, s44, 127"); a("s_lshl_b32 s3, s3, 10"); a(f"s_add_u32 s3, s3, {WS_PM}"); srd(48, 28, "s3", 768)
    a("s_mov_b32 s45, 0")
    a(f"v_add_u32 v5, {L_ACT}, v5")
    a("s_waitcnt lgkmcnt(0)")
    lab("L_m3")
    wstage_init()
    wstage_math("v", 0)
    handoff(["buffer_store_dwordx4 v[28:31], v4, s[48:51], 0 offen"])
    a("v_add_u32 v5, 2048, v5")
    a("s_add_u32 s48, s48, 0x20000"); a("s_addc_u32 s49, s49, 0")
    a("s_add_u32 s45, s45, 1"); a("s_cmp_lt_u32 s45, 2"); a("s_cbranch_scc1 L_m3")
    a("v_and_b32 v5, 255, v5")
    lab("L_hjoin")
    cm("the helper whose columns they are takes the MLP piece: third (split+1)&3, for split 2 the extra task's on odd slots")
    for i in range(4): a(f"v_mov_b32 v{12+i}, 0")
    a("s_add_u32 s43, s35, 1"); a("s_and_b32 s43, s43, 3")
    a("s_lshr_b32 s3, s32, 3"); a("s_bitcmp1_b32 s31, 0"); a("s_cselect_b32 s3, s3, 3")
    a("s_cmp_eq_u32 s43, 3"); a("s_cselect_b32 s43, s3, s43")
    a("s_cmp_eq_u32 s43, s46"); a("s_cbranch_scc0 L_nopiece")
    wait_progress("p", PAT, 8)
    a("s_lshl_b32 s3, s44, 10"); a(f"s_add_u32 s3, s3, {WS_PM}"); srd(48, 28, "s3", 768)
    a("v_min_u32 v6, 752, v4")
    poll("r", lambda: a("buffer_load_dwordx4 v[12:15], v6, s[48:51], 0 offen sc1"), 12, 1)
    a("v_sub_f32 v19, 1.0, v19")
    for i in range(4): a(f"v_mul_f32 v{12+i}, v{12+i}, v19")
    lab("L_nopiece")
    cm("all helpers: output projection of this split")
    a("s_mul_i32 s3, s44, 2304"); a("s_mul_i32 s43, s46, 768"); a("s_add_u32 s3, s3, s43")
    srd(56, 28, "s3", 768)
    stamp(3)
    a("s_waitcnt vmcnt(0) lgkmcnt(0)")
    wstage_init()
    a("s_barrier")
    stamp(4)
    wstage_math("a", L_O, True)
    a("buffer_store_dwordx4 v[28:31], v4, s[56:59], 0 offen sc1")
    if STAMP:
        a("s_cmp_eq_u32 s46, 0"); a("s_cbranch_scc1 L_nost5"); stamp(5); lab("L_nost5")
    if YB == 2: a("s_waitcnt vmcnt(0)")
    if YB: a("s_barrier")
    stamp_out()
    a("s_endpgm")
    lab("L_codeend")
    o.append('.section .rodata,"a"'); o.append(".p2align 6"); o.append(f".amdhsa_kernel {KN}_kernel")
    a(".amdhsa_next_free_vgpr 512"); a(".amdhsa_next_free_sgpr 96"); a(".amdhsa_accum_offset 256")
    a(".amdhsa_group_segment_fixed_size 0"); a(".amdhsa_kernarg_size 104"); a(".amdhsa_user_sgpr_count 2")
    a(".amdhsa_user_sgpr_kernarg_segment_ptr 1"); a(".amdhsa_system_sgpr_workgroup_id_x 1"); o.append(".end_amdhsa_kernel")
    return "\n".join(o) + "\n"

if __name__ == "__main__":
    names = []
    for spec in sys.argv[1:]:
        kw = {}
        for kv in spec.split(","):
            k, v = kv.split("=")
            kw[k] = v if k.startswith("TAB") else int(v)
        name = "k_" + spec.replace(",", "_").replace("=", "").replace("+", "") + ".s"
        open(name, "w").write(gen(**kw)); names.append(name)
    print(" ".join(names))
    print(", ".join('"work/%s"' % n for n in names))
```
